```python
import torch

def _softmax(x, axis=-1):
    return torch.softmax(x, dim=axis)
def _gelu(x):
    return torch.nn.functional.gelu(x, approximate="tanh")
def _silu(x):
    return torch.nn.functional.silu(x)
def _sigmoid(x):
    return torch.sigmoid(x)
def _layernorm(x, axis=-1, eps=1e-5):
    m = x.mean(dim=axis, keepdim=True)
    v = x.var(dim=axis, keepdim=True, unbiased=False)
    return (x - m) / torch.sqrt(v + eps)
def _scatter_add(tgt, idx, src, axis=0):
    return tgt.clone().index_add_(axis, idx, src)
def _segment_sum(src, seg, n):
    out = torch.zeros((n,) + src.shape[1:], dtype=src.dtype)
    return out.index_add_(0, seg, src)
def _pad(x, pw):
    flat = tuple(v for pair in reversed(pw) for v in pair)
    return torch.nn.functional.pad(x, flat)

kernel_name = 'standalone__edge_featured_mpnn_mpnn__graph'

def setup_inputs():

    _w = (lambda a: (lambda t: t.to(torch.bfloat16) if t.is_floating_point() else t)(torch.as_tensor(a)))
    N, deg, D, De = 25000, 32, 64, max(16, 1)
    E = N * deg
    H = 2 * D
    return {
        "x": _w((lambda *s: torch.randn(*s, dtype=torch.bfloat16) * 0.05)(N, D)),
        "e_attr": _w((lambda *s: torch.randn(*s, dtype=torch.bfloat16) * 0.8)(E, De)),
        "src": _w((lambda lo, hi, *s: torch.randint(lo, hi, s))(0, N, E).to(torch.int64)),
        "dst": _w((lambda lo, hi, *s: torch.randint(lo, hi, s))(0, N, E).to(torch.int64)),
        "w1": _w((lambda *s: torch.randn(*s, dtype=torch.bfloat16) * 0.8)(2 * D + De, H) * (1.0 / (2 * D + De) ** 0.5)),
        "b1": _w((lambda *s: torch.randn(*s, dtype=torch.bfloat16) * 0.8)(H) * 0.01),
        "w2": _w((lambda *s: torch.randn(*s, dtype=torch.bfloat16) * 0.05)(H, D) * (1.0 / H ** 0.5)),
        "b2": _w((lambda *s: torch.randn(*s, dtype=torch.bfloat16) * 0.05)(D) * 0.01),
    }

def reference(x, e_attr, src, dst, w1, b1, w2, b2):
    N, D = x.shape
    h_src = x[src]
    h_dst = x[dst]
    m_in = torch.concatenate([h_src, h_dst, e_attr], axis=-1)
    h = _silu(m_in @ w1 + b1)
    msg = h @ w2 + b2
    return _segment_sum(msg, dst, N)
```

```python
import sys, os, subprocess, struct, ctypes
sys.path.insert(0, "cdna_kernels")
import numpy as np
from cdna_launch import AsmKernel, DeviceBuffer, with_harness_metadata, pack_ptr_kernargs, _hip, _check

def gen(name, pre, body, iters, nvgpr=128):
    return f"""; @launch grid=(256,1,1) block=(1024,1,1) lds=0
.amdgcn_target "amdgcn-amd-amdhsa--gfx950"
.text
.globl {name}
.p2align 8
.type {name},@function
{name}:
    s_load_dwordx4 s[4:7], s[0:1], 0
    s_load_dwordx2 s[14:15], s[0:1], 16
    v_lshrrev_b32 v1, 6, v0
    s_lshl_b32 s3, s2, 4
    v_add_u32 v1, s3, v1
    v_and_b32 v5, 63, v0          ; lane
    s_mov_b32 s20, 25000
    s_mov_b32 s21, 800000
    s_mov_b32 s22, 1664525
    s_mov_b32 s23, 0x9E3779B1
{pre}
    v_lshlrev_b32 v1, 2, v1
    s_waitcnt lgkmcnt(0)
    s_mov_b32 s24, s6
    s_mov_b32 s25, s7
    s_mov_b32 s26, 3200000
    s_mov_b32 s27, 0x20000
    s_mov_b32 s28, s14
    s_mov_b32 s29, s15
    s_mov_b32 s30, 25600000
    s_mov_b32 s31, 0x20000
    s_barrier
    s_memtime s[8:9]
    s_waitcnt lgkmcnt(0)
    s_mov_b32 s12, {iters}
.p2align 6
L_loop:
{body}
    s_sub_u32 s12, s12, 1
    s_cmp_lg_u32 s12, 0
    s_cbranch_scc1 L_loop
    s_waitcnt vmcnt(0) lgkmcnt(0)
    s_memtime s[10:11]
    s_waitcnt lgkmcnt(0)
    s_sub_u32 s10, s10, s8
    v_mov_b32 v2, s10
    global_store_dword v1, v2, s[4:5]
    s_waitcnt vmcnt(0)
    s_endpgm
.section .rodata,"a"
.p2align 6
.amdhsa_kernel {name}
  .amdhsa_next_free_vgpr {nvgpr}
  .amdhsa_next_free_sgpr 40
  .amdhsa_accum_offset {nvgpr}
  .amdhsa_group_segment_fixed_size 0
  .amdhsa_kernarg_size 24
  .amdhsa_user_sgpr_count 2
  .amdhsa_user_sgpr_kernarg_segment_ptr 1
  .amdhsa_system_sgpr_workgroup_id_x 1
.end_amdhsa_kernel
"""

def build(name, asm):
    src = with_harness_metadata(asm, name, 3)
    open(f"/tmp/{name}.s", "w").write(src)
    r = subprocess.run(["clang", "-x", "assembler", "-target", "amdgcn-amd-amdhsa", "-mcpu=gfx950",
                        f"/tmp/{name}.s", "-o", f"/tmp/{name}.co"], capture_output=True, text=True)
    if r.returncode != 0:
        print(r.stderr); raise SystemExit(1)
    return f"/tmp/{name}.co"

bufs = None
def run(name, pre, body, tiles_per_cu=400, waves=(1,2,4), nvgpr=128, tiles_per_iter=2):
    global bufs
    res = []
    for w in waves:
        iters = tiles_per_cu // (4*w) // tiles_per_iter
        kn = f"{name}_w{w}_kernel"
        co = build(kn, gen(kn, pre, body, iters, nvgpr))
        if not os.path.exists('/dev/kfd'):
            print(name, "assembled"); continue
        k = AsmKernel(co, kn)
        if bufs is None:
            bufs = (DeviceBuffer(256*16*4), DeviceBuffer.from_numpy(np.zeros(3200000//4, np.uint32)), DeviceBuffer.from_numpy(np.zeros(25600000//4, np.uint32)))
        out, x, e = bufs
        ka = pack_ptr_kernargs([out.ptr, x.ptr, e.ptr])
        for rep in range(3):
            k.launch((256,1,1), (256*w,1,1), ka, shared_mem=100*1024)
            _check(_hip.hipDeviceSynchronize())
        o = out.to_numpy(np.uint32, (256,16))[:, :4*w]
        cyc = np.median(o.max(axis=1)) / (iters*tiles_per_iter*4*w)
        res.append((w, cyc))
        k.unload()
    print(f"{name:30s} " + "  ".join(f"w{w}: {c:8.1f} cyc/tile/CU" for w,c in res))

def pre_mfma():
    return """
    v_and_b32 v6, 31, v5
    v_lshl_add_u32 v6, v1, 5, v6
    v_add_u32 v6, 1, v6
    v_mul_lo_u32 v6, v6, s23
    v_lshrrev_b32 v7, 5, v5       ; half
"""
def step(dst_x, dst_e):
    return f"""
    v_mul_lo_u32 v6, v6, s22
    v_add_u32 v6, 0x3c6ef35f, v6
    v_mul_hi_u32 v{dst_x}, v6, s20
    v_mul_lo_u32 v3, v6, s23
    v_mul_hi_u32 v{dst_e}, v3, s21
"""
def bodyA(base, dox=True, doe=True, modeB=False, nwait=None):
    s = step(8, 9)
    s += "    v_lshlrev_b32 v8, 7, v8\n"
    s += f"    v_lshl_add_u32 v8, v7, {6 if modeB else 4}, v8\n"
    s += "    v_lshlrev_b32 v9, 5, v9\n    v_lshl_add_u32 v9, v7, 4, v9\n"
    n=0
    if dox:
        for i in range(4):
            s += f"    buffer_load_dwordx4 v[{base+4*i}:{base+4*i+3}], v8, s[24:27], 0 offen offset:{i*(16 if modeB else 32)}\n"; n+=1
    if doe:
        s += f"    buffer_load_dwordx4 v[{base+16}:{base+19}], v9, s[28:31], 0 offen\n"; n+=1
    s += f"    s_waitcnt vmcnt({n*(nwait or 1)})\n"
    return s

def pre_row():
    return """
    v_lshrrev_b32 v6, 3, v5
    v_lshl_add_u32 v6, v1, 5, v6
    v_add_u32 v6, 1, v6
    v_mul_lo_u32 v6, v6, s23
    v_and_b32 v7, 7, v5
"""
def pre_pair():
    return """
    v_lshrrev_b32 v6, 1, v5
    v_lshl_add_u32 v6, v1, 5, v6
    v_add_u32 v6, 1, v6
    v_mul_lo_u32 v6, v6, s23
    v_and_b32 v7, 1, v5
"""
```

```python
from g3 import *
def pre_both(shx):
    return f"""
    v_lshrrev_b32 v6, {shx}, v5
    v_lshl_add_u32 v6, v1, 6, v6
    v_add_u32 v6, 1, v6
    v_mul_lo_u32 v6, v6, s23
    v_and_b32 v7, {(1<<shx)-1}, v5
    v_and_b32 v10, 31, v5
    v_lshl_add_u32 v10, v1, 5, v10
    v_add_u32 v10, 77, v10
    v_mul_lo_u32 v10, v10, s23
    v_lshrrev_b32 v11, 5, v5
"""
def stepx():
    return """
    v_mul_lo_u32 v6, v6, s22
    v_add_u32 v6, 0x3c6ef35f, v6
    v_mul_hi_u32 v8, v6, s20
    v_lshlrev_b32 v8, 7, v8
    v_lshl_add_u32 v8, v7, 4, v8
"""
def body(base, shx, eflags, xflags="", nwait=3, doe=True, dox=True):
    s = ""
    per = 128 // (16 << shx)
    n = 0
    for t in range(4 // per if dox else 0):
        s += stepx()
        for j in range(per):
            s += f"    buffer_load_dwordx4 v[{base+4*n}:{base+4*n+3}], v8, s[24:27], 0 offen offset:{j*(16<<shx)} {xflags}\n"
            n += 1
    if doe:
        s += """
    v_mul_lo_u32 v10, v10, s22
    v_add_u32 v10, 0x3c6ef35f, v10
    v_mul_hi_u32 v9, v10, s21
    v_lshlrev_b32 v9, 5, v9
    v_lshl_add_u32 v9, v11, 4, v9
"""
        s += f"    buffer_load_dwordx4 v[{base+16}:{base+19}], v9, s[28:31], 0 offen {eflags}\n"
        n += 1
    s += f"    s_waitcnt vmcnt({n*nwait})\n"
    return s
```
